```python
import torch

def _softmax(x, axis=-1):
    return torch.softmax(x, dim=axis)

def _gelu(x):
    return torch.nn.functional.gelu(x, approximate='tanh')

def _silu(x):
    return torch.nn.functional.silu(x)

def _sigmoid(x):
    return torch.sigmoid(x)

def _layernorm(x, axis=-1, eps=1e-05):
    m = x.mean(dim=axis, keepdim=True)
    v = x.var(dim=axis, keepdim=True, unbiased=False)
    return (x - m) / torch.sqrt(v + eps)

def _scatter_add(tgt, idx, src, axis=0):
    return tgt.clone().index_add_(axis, idx, src)

def _segment_sum(src, seg, n):
    out = torch.zeros((n,) + src.shape[1:], dtype=src.dtype)
    return out.index_add_(0, seg, src)

def _pad(x, pw):
    flat = tuple((v for pair in reversed(pw) for v in pair))
    return torch.nn.functional.pad(x, flat)
kernel_name = 'sequential_preLN__sliding_block__mixer_gmlp__prompt'

def setup_inputs():

    _w = lambda a: (lambda t: t.to(torch.bfloat16) if t.is_floating_point() else t)(torch.as_tensor(a))

    def _A_setup():
        B, S, D = (1, 2048, 576)
        return {'x': _w((lambda *s: torch.randn(*s, dtype=torch.bfloat16) * 0.05)(B, S, D)), 'wqkv': _w((lambda *s: torch.randn(*s, dtype=torch.bfloat16) * 0.05)(D, 3 * D)), 'wo': _w((lambda *s: torch.randn(*s, dtype=torch.bfloat16) * 0.05)(D, D))}
    _A_in = _A_setup()

    def _B_setup():
        B, S, D, F = (1, 2048, 576, 4608)
        Fh = F // 2
        return {'x': _w((lambda *s: torch.randn(*s, dtype=torch.bfloat16) * 0.05)(B, S, D)), 'w_in': _w((lambda *s: torch.randn(*s, dtype=torch.bfloat16) * 0.8)(D, 2 * Fh)), 'w_sp': _w(0.01 * (lambda *s: torch.randn(*s, dtype=torch.bfloat16) * 0.8)(S, S)), 'b_sp': _w(1.0 + 0.01 * (lambda *s: torch.randn(*s, dtype=torch.bfloat16) * 0.05)(S)), 'w_out': _w((lambda *s: torch.randn(*s, dtype=torch.bfloat16) * 0.05)(Fh, D))}
    _B_in = _B_setup()
    return {'A_x': _A_in['x'], 'A_wqkv': _A_in['wqkv'], 'A_wo': _A_in['wo'], 'B_x': _B_in['x'], 'B_w_in': _B_in['w_in'], 'B_w_sp': _B_in['w_sp'], 'B_b_sp': _B_in['b_sp'], 'B_w_out': _B_in['w_out']}

def reference(A_x, A_wqkv, A_wo, B_x, B_w_in, B_w_sp, B_b_sp, B_w_out):

    def _A_ref(x, wqkv, wo):
        B, S, D = x.shape
        H = 32
        Dh = D // H
        W = 256
        qkv = (lambda x, *d: x.permute(*d))((x @ wqkv).reshape(B, S, 3, H, Dh), 2, 0, 3, 1, 4)
        q, k, v = (qkv[0], qkv[1], qkv[2])
        scores = torch.einsum('bhqd,bhkd->bhqk', q, k) * Dh ** (-0.5)
        idx = torch.arange(S)
        mask = (idx[:, None] - idx[None, :] >= 0) & (idx[:, None] - idx[None, :] < W)
        scores = torch.where(mask[None, None], scores, -1000000000.0)
        p = _softmax(scores, axis=-1)
        o = torch.einsum('bhqk,bhkd->bhqd', p, v)
        return (lambda x, *d: x.permute(*d))(o, 0, 2, 1, 3).reshape(B, S, D) @ wo

    def _B_ref(x, w_in, w_sp, b_sp, w_out):
        B, S, D = x.shape
        F = w_in.shape[-1]
        Fh = F // 2
        z = _gelu(torch.einsum('bsd,df->bsf', x, w_in))
        z1 = z[..., :Fh].clone()
        z2 = _layernorm(z[..., Fh:], axis=-1)
        g = torch.einsum('ts,bsf->btf', w_sp, z2) + b_sp[None, :, None]
        return torch.einsum('bsf,fd->bsd', z1 * g, w_out)
    x = A_x
    h = x + _A_ref(_layernorm(x, axis=-1), A_wqkv, A_wo)
    h2 = h + _B_ref(_layernorm(h, axis=-1), B_w_in, B_w_sp, B_b_sp, B_w_out)
    return h2
```

```python
S, D, H, DH, F, FH = 2048, 576, 32, 18, 4608, 2304

KA_X, KA_WQKV, KA_WO, KA_BX, KA_WIN, KA_WSP, KA_BSP, KA_WOUT, KA_OUT, KA_DBG, KA_WS = [8*i for i in range(11)]

MB = 1 << 20
WS_QKV  = 0
QKV_HEAD = 128*640
WS_O    = 8*MB
WS_H    = 11*MB
WS_HST  = 14*MB
WS_CS   = 14*MB + 256*1024
WS_R    = 14*MB + 512*1024
WS_ZST  = 15*MB
WS_Z1   = 16*MB
WS_Z2   = 26*MB
WS_XN   = 36*MB
WS_END  = 39*MB
ZST_BYTES = 8*32*256*8

class Asm:
    def __init__(self, name):
        self.name = name
        self.L = []
        self.n = 0
    def __call__(self, s):
        for ln in s.split("\n"):
            ln = ln.strip()
            if ln.startswith("buffer_") and "offset:" in ln:
                assert int(ln.split("offset:")[1].split()[0]) < 4096, ln
            if ln.startswith("ds_") and " offset:" in ln:
                assert int(ln.split(" offset:")[1].split()[0]) < 65536, ln
            if ln: self.L.append(("" if ln.endswith(":") else "    ") + ln)
    def lab(self, s): return f"L_{self.name}_{s}"
    def label(self, s): self.L.append(self.lab(s) + ":")
    def srd(self, d, base, off, size):
        if isinstance(off, int) and off == 0:
            self(f"s_mov_b32 s{d}, s{base}\ns_mov_b32 s{d+1}, s{base+1}")
        else:
            self(f"s_add_u32 s{d}, s{base}, {off}\ns_addc_u32 s{d+1}, s{base+1}, 0")
        self(f"s_mov_b32 s{d+2}, {size}\ns_mov_b32 s{d+3}, 0x20000")
    def text(self): return "\n".join(self.L)

def vr(a, n=1): return f"v{a}" if n == 1 else f"v[{a}:{a+n-1}]"
def sr(a, n=1): return f"s{a}" if n == 1 else f"s[{a}:{a+n-1}]"

def kernel_text(name, body):
    return f""".text
.globl {name}
.p2align 8
.type {name},@function
{name}:
{body}
"""

def kernel_desc(name, vgpr, sgpr=96, accum=None):
    sgpr = 102
    accum = accum or ((vgpr + 3)//4*4)
    return f""".amdhsa_kernel {name}
  .amdhsa_next_free_vgpr {vgpr}
  .amdhsa_next_free_sgpr {sgpr}
  .amdhsa_accum_offset {accum}
  .amdhsa_group_segment_fixed_size 0
  .amdhsa_kernarg_size 88
  .amdhsa_user_sgpr_count 2
  .amdhsa_user_sgpr_kernarg_segment_ptr 1
  .amdhsa_system_sgpr_workgroup_id_x 1
  .amdhsa_float_denorm_mode_32 3
.end_amdhsa_kernel
"""

def build(kernels, header=""):
    out = [header] if header else []
    for k in kernels:
        out.append(f"; @launch kernel={k['name']} grid=({k['grid']},1,1) block=({k['block']},1,1) lds={k['lds']}")
    out.append('.amdgcn_target "amdgcn-amd-amdhsa--gfx950"')
    seen = {}
    for k in kernels:
        if k['name'] in seen: continue
        seen[k['name']] = k
        out.append(kernel_text(k['name'], k['body']))
    out.append('.section .rodata,"a"')
    for k in seen.values():
        out.append(".p2align 6")
        out.append(kernel_desc(k['name'], k['vgpr'], k.get('sgpr', 96), k.get('accum')))
    return "\n".join(out) + "\n"

def interleave(main, fill, per_gap):
    out = []; fi = 0
    for m in main:
        out.append(m)
        for _ in range(per_gap):
            if fi < len(fill): out.append(fill[fi]); fi += 1
    out += fill[fi:]
    return out

def stamp_begin(a):
    a("s_memtime s[80:81]\ns_memrealtime s[82:83]")
def stamp_mid(a, i):
    r = [84, 86, 96, 98][i]
    a(f"s_memtime s[{r}:{r+1}]")
def stamp_end(a, wave_sgpr, slot):
    a(f"""
    s_waitcnt vmcnt(0)
    s_memtime s[88:89]
    s_memrealtime s[90:91]
    s_load_dwordx2 s[92:93], s[0:1], {KA_WS}
    s_waitcnt lgkmcnt(0)
    s_sub_u32 s88, s88, s80
    s_sub_u32 s84, s84, s80
    s_sub_u32 s86, s86, s80
    s_sub_u32 s96, s96, s80
    s_sub_u32 s98, s98, s80
    v_mov_b32 v4, s84
    v_mov_b32 v5, s86
    v_mov_b32 v6, s88
    v_mov_b32 v7, s82
    v_mov_b32 v8, s96
    v_mov_b32 v9, s98
    v_mov_b32 v10, 0
    v_mov_b32 v11, s90
    s_lshl_b32 s94, s2, 8
    s_lshl_b32 s95, {wave_sgpr}, 5
    s_add_u32 s94, s94, s95
    s_add_u32 s94, s94, {WS_END + slot*65536}
    v_mov_b32 v2, s94
    s_mov_b64 exec, 1
    global_store_dwordx4 v2, v[4:7], s[92:93]
    global_store_dwordx4 v2, v[8:11], s[92:93] offset:16
    s_waitcnt vmcnt(0)
    """)
```

```python
import sys, importlib
from common import *
def make(opts={}, names="k0,k1,k2,k3,k4,k5,k6", extra=0):
    ks = []
    for n in names.split(","):
        ks.append(getk(n, opts))
    for i in range(extra):
        ks.append(dict(name="nop_kernel", body="    s_endpgm", grid=256, block=256, lds=0, vgpr=8, sgpr=16))
    hdr = "; sequential preLN sliding-window attention + gMLP block, gfx950; generated by gen/mk.py"
    return build(ks, hdr)
if __name__ == "__main__":
    out = sys.argv[1] if len(sys.argv) > 1 else "sequential_preLN__sliding_block__mixer_gmlp__prompt.s"
    opts = eval(sys.argv[2]) if len(sys.argv) > 2 else {}
    extra = int(sys.argv[3]) if len(sys.argv) > 3 else 0
    open(out, "w").write(make(opts, extra=extra))
```

```python
S, D, H, DH, F, FH = 2048, 576, 32, 18, 4608, 2304

KA_X, KA_WQKV, KA_WO, KA_BX, KA_WIN, KA_WSP, KA_BSP, KA_WOUT, KA_OUT, KA_DBG, KA_WS = [8*i for i in range(11)]

MB = 1 << 20
WS_QKV  = 0
QKV_HEAD = 128*640
WS_O    = 8*MB
WS_H    = 11*MB
WS_HST  = 14*MB
WS_CS   = 14*MB + 256*1024
WS_R    = 14*MB + 512*1024
WS_ZST  = 15*MB
WS_Z1   = 16*MB
WS_Z2   = 26*MB
WS_XN   = 36*MB
WS_END  = 39*MB
ZST_BYTES = 8*32*256*8

class Asm:
    def __init__(self, name):
        self.name = name
        self.L = []
        self.n = 0
    def __call__(self, s):
        for ln in s.split("\n"):
            ln = ln.strip()
            if ln.startswith("buffer_") and "offset:" in ln:
                assert int(ln.split("offset:")[1].split()[0]) < 4096, ln
            if ln.startswith("ds_") and " offset:" in ln:
                assert int(ln.split(" offset:")[1].split()[0]) < 65536, ln
            if ln: self.L.append(("" if ln.endswith(":") else "    ") + ln)
    def lab(self, s): return f"L_{self.name}_{s}"
    def label(self, s): self.L.append(self.lab(s) + ":")
    def srd(self, d, base, off, size):
        if isinstance(off, int) and off == 0:
            self(f"s_mov_b32 s{d}, s{base}\ns_mov_b32 s{d+1}, s{base+1}")
        else:
            self(f"s_add_u32 s{d}, s{base}, {off}\ns_addc_u32 s{d+1}, s{base+1}, 0")
        self(f"s_mov_b32 s{d+2}, {size}\ns_mov_b32 s{d+3}, 0x20000")
    def text(self): return "\n".join(self.L)

def vr(a, n=1): return f"v{a}" if n == 1 else f"v[{a}:{a+n-1}]"
def sr(a, n=1): return f"s{a}" if n == 1 else f"s[{a}:{a+n-1}]"

def kernel_text(name, body):
    return f""".text
.globl {name}
.p2align 8
.type {name},@function
{name}:
{body}
"""

def kernel_desc(name, vgpr, sgpr=96, accum=None):
    sgpr = 102
    accum = accum or ((vgpr + 3)//4*4)
    return f""".amdhsa_kernel {name}
  .amdhsa_next_free_vgpr {vgpr}
  .amdhsa_next_free_sgpr {sgpr}
  .amdhsa_accum_offset {accum}
  .amdhsa_group_segment_fixed_size 0
  .amdhsa_kernarg_size 88
  .amdhsa_user_sgpr_count 2
  .amdhsa_user_sgpr_kernarg_segment_ptr 1
  .amdhsa_system_sgpr_workgroup_id_x 1
  .amdhsa_float_denorm_mode_32 3
.end_amdhsa_kernel
"""

def build(kernels, header=""):
    out = [header] if header else []
    for k in kernels:
        out.append(f"; @launch kernel={k['name']} grid=({k['grid']},1,1) block=({k['block']},1,1) lds={k['lds']}")
    out.append('.amdgcn_target "amdgcn-amd-amdhsa--gfx950"')
    seen = {}
    for k in kernels:
        if k['name'] in seen: continue
        seen[k['name']] = k
        out.append(kernel_text(k['name'], k['body']))
    out.append('.section .rodata,"a"')
    for k in seen.values():
        out.append(".p2align 6")
        out.append(kernel_desc(k['name'], k['vgpr'], k.get('sgpr', 96), k.get('accum')))
    return "\n".join(out) + "\n"

def interleave(main, fill, per_gap):
    out = []; fi = 0
    for m in main:
        out.append(m)
        for _ in range(per_gap):
            if fi < len(fill): out.append(fill[fi]); fi += 1
    out += fill[fi:]
    return out

def stamp_begin(a):
    a("s_memtime s[80:81]\ns_memrealtime s[82:83]")
def stamp_mid(a, i):
    r = [84, 86, 96, 98][i]
    a(f"s_memtime s[{r}:{r+1}]")
def stamp_end(a, wave_sgpr, slot):
    a(f"""
    s_waitcnt vmcnt(0)
    s_memtime s[88:89]
    s_memrealtime s[90:91]
    s_load_dwordx2 s[92:93], s[0:1], {KA_WS}
    s_waitcnt lgkmcnt(0)
    s_sub_u32 s88, s88, s80
    s_sub_u32 s84, s84, s80
    s_sub_u32 s86, s86, s80
    s_sub_u32 s96, s96, s80
    s_sub_u32 s98, s98, s80
    v_mov_b32 v4, s84
    v_mov_b32 v5, s86
    v_mov_b32 v6, s88
    v_mov_b32 v7, s82
    v_mov_b32 v8, s96
    v_mov_b32 v9, s98
    v_mov_b32 v10, 0
    v_mov_b32 v11, s90
    s_lshl_b32 s94, s2, 8
    s_lshl_b32 s95, {wave_sgpr}, 5
    s_add_u32 s94, s94, s95
    s_add_u32 s94, s94, {WS_END + slot*65536}
    v_mov_b32 v2, s94
    s_mov_b64 exec, 1
    global_store_dwordx4 v2, v[4:7], s[92:93]
    global_store_dwordx4 v2, v[8:11], s[92:93] offset:16
    s_waitcnt vmcnt(0)
    """)

def getk(n, opts, stamp=False):
    import importlib
    o = dict(opts.get(n, {}))
    mod = o.pop('mod', 'k3' if n == 'k6' else n)
    return getattr(importlib.import_module(mod), 'gen_' + n)(stamp=stamp, **o)
```
